```python
import torch

def _softmax(x, axis=-1):
    return torch.softmax(x, dim=axis)
def _gelu(x):
    return torch.nn.functional.gelu(x, approximate="tanh")
def _silu(x):
    return torch.nn.functional.silu(x)
def _sigmoid(x):
    return torch.sigmoid(x)
def _layernorm(x, axis=-1, eps=1e-5):
    m = x.mean(dim=axis, keepdim=True)
    v = x.var(dim=axis, keepdim=True, unbiased=False)
    return (x - m) / torch.sqrt(v + eps)
def _scatter_add(tgt, idx, src, axis=0):
    return tgt.clone().index_add_(axis, idx, src)
def _segment_sum(src, seg, n):
    out = torch.zeros((n,) + src.shape[1:], dtype=src.dtype)
    return out.index_add_(0, seg, src)
def _pad(x, pw):
    flat = tuple(v for pair in reversed(pw) for v in pair)
    return torch.nn.functional.pad(x, flat)

kernel_name = 'gated_mix__spectral_gfnet__mixer_token_mlp__prompt'

def setup_inputs():

    _w = (lambda a: (lambda t: t.to(torch.bfloat16) if t.is_floating_point() else t)(torch.as_tensor(a)))
    def _A_setup():
        B, S, D = 1, 2048, 640
        Df = D // 2 + 1
        return {
            "x": _w((lambda *s: torch.randn(*s, dtype=torch.bfloat16) * 0.05)(B, S, D)),
            "w_r": _w((lambda *s: torch.randn(*s, dtype=torch.bfloat16) * 0.8)(S, Df) * 0.02),
            "w_i": _w((lambda *s: torch.randn(*s, dtype=torch.bfloat16) * 0.8)(S, Df) * 0.02),
        }
    _A_in = _A_setup()

    def _B_setup():
        B, S, D, F = 1, 2048, 640, 1728
        return {
            "x": _w((lambda *s: torch.randn(*s, dtype=torch.bfloat16) * 0.05)(B, S, D)),
            "w1": _w((lambda *s: torch.randn(*s, dtype=torch.bfloat16) * 0.2)(S, F) * (S ** -0.5)),
            "b1": _w((lambda *s: torch.randn(*s, dtype=torch.bfloat16) * 3.2)(F) * 0.02),
            "w2": _w((lambda *s: torch.randn(*s, dtype=torch.bfloat16) * 0.05)(F, S) * (F ** -0.5)),
            "b2": _w((lambda *s: torch.randn(*s, dtype=torch.bfloat16) * 0.1)(S) * 0.02),
        }
    _B_in = _B_setup()

    return {
        "A_x": _A_in["x"],
        "A_w_r": _A_in["w_r"],
        "A_w_i": _A_in["w_i"],
        "B_x": _B_in["x"],
        "B_w1": _B_in["w1"],
        "B_b1": _B_in["b1"],
        "B_w2": _B_in["w2"],
        "B_b2": _B_in["b2"],
        "gate_w": _w((lambda *s: torch.randn(*s, dtype=torch.bfloat16) * 0.05)(640) * 16.0),
    }

def reference(A_x, A_w_r, A_w_i, B_x, B_w1, B_b1, B_w2, B_b2, gate_w):
    def _A_ref(x, w_r, w_i):
        B, S, D = x.shape
        X = (lambda x, axes=(-2,-1): torch.fft.rfft2(x.float(), dim=axes))(x, axes=(-2, -1))
        W = w_r + 1j * w_i
        X = X * W
        y = (lambda x, s, axes=(-2,-1): torch.fft.irfft2(x, s=s, dim=axes).to(torch.bfloat16))(X, (S, D), axes=(-2, -1))
        return y

    def _B_ref(x, w1, b1, w2, b2):
        B, S, D = x.shape
        h = _layernorm(x, axis=-1)
        u = torch.einsum("bsd,sf->bdf", h, w1) + b1
        u = _gelu(u)
        y = torch.einsum("bdf,fs->bds", u, w2) + b2
        return (lambda x, *d: x.permute(*d))(y, 0, 2, 1)

    x = A_x
    g = _sigmoid((x * gate_w).sum(-1, keepdims=True))
    a = _A_ref(x, A_w_r, A_w_i)
    b = _B_ref(x, B_w1, B_b1, B_w2, B_b2)
    return g * a + (1 - g) * b
```

```python
import numpy as np, math
S, D, F = 2048, 640, 1728
HT_OFF = 0x0
XD_OFF = 0x280000
WT_OFF = 0x502000
GATE_OFF = 0x784000
U_OFF = 0x786000
ZT_OFF = 0x9A2000
GT_OFF = 0xC22000
WS_USED = 0xCEA000

def tobf(x):
    u = np.asarray(x, np.float32).view(np.uint32)
    return ((u + 0x7FFF + ((u >> 16) & 1)) >> 16).astype(np.uint16)
def frombf(u):
    return (np.asarray(u, np.uint16).astype(np.uint32) << 16).view(np.float32)
def tof16(x):
    return np.asarray(x, np.float32).astype(np.float16).view(np.uint16)
def cs(num, den):
    num = np.asarray(num, np.int64) % den
    ang = num.astype(np.float64) * (2 * math.pi / den)
    c, s = np.cos(ang), np.sin(ang)
    c[np.abs(c) < 1e-12] = 0.0; s[np.abs(s) < 1e-12] = 0.0
    return c, s
def perm16(q, h, t):
    return 16 * q + 8 * (t // 4) + 4 * h + t % 4

L = np.arange(64)[:, None]
T = np.arange(8)[None, :]
LO = L % 32; H = L // 32

def frag(vals):
    return tobf(vals).reshape(64, 8)

def table1():
    out = []
    for q in range(2):
        b = 16 * q + 8 * H + T; e = LO
        c, s = cs(b * e, 32)
        out.append(frag(c)); out.append(frag(-s))
    for which in range(2):
        for q2 in range(2):
            m = LO + 0 * T
            a = 8 * (2 * q2 + T // 4) + 4 * H + T % 4
            cc = m % 16; isim = m // 16
            c, s = cs(cc * a, 20)
            Fr, Fi = c, -s
            if which == 0: v = np.where(isim == 0, Fr, Fi)
            else: v = np.where(isim == 0, -Fi, Fr)
            v = np.where((a < 20) & (cc <= 10), v, 0.0)
            out.append(frag(v))
    fr = np.concatenate([o.reshape(-1) for o in out]).view(np.uint32)
    tw = np.zeros((3, 64, 4), np.uint32)
    for r in range(12):
        j, i = r // 4, r % 4
        a = 8 * j + 4 * H[:, 0] + i; e = LO[:, 0]
        c, s = cs(e * a, 640)
        tw[j, :, i] = tof16(c).astype(np.uint32) | (tof16(-s).astype(np.uint32) << 16)
    return np.concatenate([fr, tw.reshape(-1)])

def table2():
    out = []
    for ri3 in range(3):
        for q in range(2):
            k = perm16(q, H, T); n = LO
            c, s = cs(k * n, 32)
            out.append(frag([c, -s, s][ri3]))
    for par in range(2):
        for ri3 in range(3):
            for mt in range(2):
                e = LO; b = 32 * mt + 8 * (T // 2) + 4 * H + 2 * (T % 2) + par
                c, s = cs(e * b, 64)
                out.append(frag([c, -s, s][ri3]))
    for ri3 in range(3):
        for q in range(2):
            e = perm16(q, H, T); n = LO
            c, s = cs(e * (2 * n + 1), 64)
            out.append(frag([c, s, -s][ri3]))
    fr = np.concatenate([o.reshape(-1) for o in out]).view(np.uint32)
    tw1 = np.zeros((8, 64, 4), np.uint32); tw2 = np.zeros((8, 64, 4), np.uint32)
    for mt in range(2):
        for j in range(4):
            for i in range(4):
                b = 32 * mt + 8 * j + 4 * H[:, 0] + i; c_ = LO[:, 0]
                c, s = cs(b * c_, 2048)
                tw1[mt * 4 + j, :, i] = tof16(c).astype(np.uint32) | (tof16(-s).astype(np.uint32) << 16)
    for par in range(2):
        for j in range(4):
            for i in range(4):
                c_ = 8 * j + 4 * H[:, 0] + i; bp = 2 * LO[:, 0] + par
                c, s = cs(bp * c_, 2048)
                tw2[par * 4 + j, :, i] = tof16(c).astype(np.uint32) | (tof16(s).astype(np.uint32) << 16)
    return np.concatenate([fr, tw1.reshape(-1), tw2.reshape(-1)])

class Asm:
    def __init__(self):
        self.l = []
        self.uid = 0
    def __call__(self, s):
        for x in s.split("\n"):
            x = x.strip()
            if x: self.l.append("    " + x if not x.endswith(":") else x)
    def label(self, s): self.l.append(s + ":")
    def c(self, s): self.l.append("    ; " + s)
    def text(self): return "\n".join(self.l) + "\n"
    def srd(self, d, lo, nbytes):
        self(f"s_mov_b32 s{d}, s{lo}\ns_and_b32 s{d+1}, s{lo+1}, 0xffff\ns_mov_b32 s{d+2}, {nbytes}\ns_mov_b32 s{d+3}, 0x20000")
    def data(self, name, arr):
        arr = np.asarray(arr, np.uint32)
        self.l.append(".p2align 8")
        self.l.append(f".type {name},@object")
        self.l.append(f"{name}:")
        for i in range(0, len(arr), 16):
            self.l.append(".long " + ",".join("0x%x" % v for v in arr[i:i + 16]))
        self.l.append(f".size {name}, {len(arr) * 4}")

def vr(a, n): return f"v[{a}:{a+n-1}]"
def sr(a, n): return f"s[{a}:{a+n-1}]"
```

```python
from common import *
V_DMA = 3; V_B = 4; V_TR = 9; ACC = 16; AF = 96; BS = 112
def gemm_setup_tr(a, s_lds):
    a(f"""v_lshrrev_b32 v13, 4, v2
    v_and_b32 v14, 15, v2
    v_lshrrev_b32 v15, 2, v14
    v_and_b32 v14, 3, v14
    v_lshl_add_u32 v13, v13, 2, v15
    v_lshrrev_b32 v15, 1, v13
    v_and_b32 v15, 3, v15
    v_lshlrev_b32 v13, 7, v13
    v_lshl_add_u32 v13, v14, 3, v13
    v_add_u32 v13, s{s_lds}, v13""")
    for j in range(4):
        a(f"v_xor_b32 v1, {j}, v15\nv_lshl_add_u32 v{V_TR+j}, v1, 5, v13")
def dma_lane_piece(a, dst):
    a(f"""v_lshrrev_b32 v13, 3, v2
    v_lshrrev_b32 v14, 1, v13
    v_and_b32 v14, 3, v14
    v_lshlrev_b32 v14, 1, v14
    v_and_b32 v15, 7, v2
    v_xor_b32 v14, v14, v15
    v_lshlrev_b32 v{dst}, 4, v14""")

def gemm_loop(a, n, D, srd_a, srd_b, s_lds, s_dma, s_b, s_t, dma_const, swap):
    NS = D + 1
    def issue(kk):
        slot = kk % NS
        for i in range(4):
            a(f"s_add_u32 m0, s{s_lds}, {slot*4096 + i*1024}")
            a(f"s_add_u32 s{s_t}, s{s_dma}, {dma_const(kk, i)}")
            a(f"buffer_load_dwordx4 v{V_DMA}, {sr(srd_a,4)}, s{s_t} offen lds")
        if kk % 4 == 0 and kk > 0:
            a(f"s_add_u32 s{s_b}, s{s_b}, 4096")
        for dt in range(5):
            r = BS + slot * 20 + dt * 4
            off = (kk % 4) * 1024
            a(f"buffer_load_dwordx4 {vr(r,4)}, v{V_B+dt}, {sr(srd_b,4)}, s{s_b} offen" + (f" offset:{off}" if off else ""))
    for kk in range(min(D, n)): issue(kk)
    for k in range(n):
        slot = k % NS
        inflight_after = min(D - 1, n - 1 - k)
        a(f"s_waitcnt vmcnt({9*inflight_after})")
        for j in range(4):
            a(f"ds_read_b64_tr_b16 v[{AF+4*j}:{AF+4*j+1}], v{V_TR+j} offset:{slot*4096}")
            a(f"ds_read_b64_tr_b16 v[{AF+4*j+2}:{AF+4*j+3}], v{V_TR+j} offset:{slot*4096+2048}")
        if k + D < n: issue(k + D)
        for j in range(4):
            a(f"s_waitcnt lgkmcnt({6-2*j})")
            for dt in range(5):
                acc = ACC + (j * 5 + dt) * 4
                c = "0" if k == 0 else vr(acc, 4)
                A, B = vr(AF + 4 * j, 4), vr(BS + slot * 20 + dt * 4, 4)
                if swap: A, B = B, A
                a(f"v_mfma_f32_16x16x32_bf16 {vr(acc,4)}, {A}, {B}, {c}")
```

```python
from common import *

K1_LDS = 38912
X_PITCH = 1344
C1_OFF = 8 * X_PITCH
ST_OFF = C1_OFF + 11264
TILE_OFF = 22272
W_PITCH = 656

def wave_sum(a, regs, tmps):
    for mod in ("quad_perm:[1,0,3,2]", "quad_perm:[2,3,0,1]", "row_half_mirror", "row_mirror"):
        for r in regs:
            a(f"v_add_f32_dpp v{r}, v{r}, v{r} {mod} row_mask:0xf bank_mask:0xf")
        if len(regs) < 3: a(f"s_nop {2 - len(regs)}")
    for op in ("v_permlane16_swap_b32", "v_permlane32_swap_b32"):
        for r, t in zip(regs, tmps):
            a(f"v_mov_b32 v{t}, v{r}")
        a("s_nop 1")
        for r, t in zip(regs, tmps):
            a(f"{op} v{r}, v{t}")
        a("s_nop 1")
        for r, t in zip(regs, tmps):
            a(f"v_add_f32 v{r}, v{r}, v{t}")
        a("s_nop 1")

def gen_k1(a, name="k1_kernel"):
    a(f".globl {name}\n.p2align 8\n.type {name},@function")
    a.label(name)
    a("s_cmp_ge_u32 s2, 384\ns_cbranch_scc1 K1_END")
    a("s_load_dwordx2 s[4:5], s[0:1], 0\ns_load_dwordx2 s[6:7], s[0:1], 88\ns_load_dwordx2 s[28:29], s[0:1], 64\ns_load_dwordx4 s[32:35], s[0:1], 8")
    a("v_lshrrev_b32 v1, 6, v0\nv_and_b32 v2, 63, v0")
    a("s_getpc_b64 s[30:31]")
    a("s_add_u32 s30, s30, table1@rel32@lo+4\ns_addc_u32 s31, s31, table1@rel32@hi+12")
    a("v_readfirstlane_b32 s24, v1")
    a("v_lshlrev_b32 v3, 4, v2\nv_lshlrev_b32 v4, 2, v2")
    a("s_waitcnt lgkmcnt(0)")
    a.srd(12, 6, WS_USED)
    a("s_cmp_ge_u32 s2, 256\ns_cbranch_scc1 K1_WPATH")
    a.srd(8, 4, S * D * 2)
    a.srd(16, 30, 11264)
    a.srd(20, 28, D * 2)
    a("""s_and_b32 s25, s2, 7
    s_lshr_b32 s26, s2, 3
    s_and_b32 s27, s26, 7
    s_lshr_b32 s26, s26, 3          ; g
    s_lshl_b32 s25, s25, 3
    s_add_u32 s25, s25, s27         ; b
    s_lshr_b32 s36, s26, 1          ; q
    s_and_b32 s37, s26, 1           ; h
    s_lshl_b32 s38, s36, 4
    s_lshr_b32 s39, s24, 2
    s_lshl_b32 s39, s39, 3
    s_add_u32 s38, s38, s39
    s_lshl_b32 s39, s37, 2
    s_add_u32 s38, s38, s39
    s_and_b32 s39, s24, 3
    s_add_u32 s38, s38, s39         ; a
    s_lshl_b32 s38, s38, 6
    s_add_u32 s38, s38, s25         ; s row
    s_mul_i32 s39, s38, 1280""")
    for j in range(5): a(f"buffer_load_dword v{8+j}, v4, s[8:11], s39 offen offset:{256*j}")
    for j in range(5): a(f"buffer_load_dword v{13+j}, v4, s[20:23], 0 offen offset:{256*j}")
    a(f"""s_mul_i32 s40, s24, {X_PITCH}
    s_mov_b32 m0, s40
    s_add_u32 s41, s39, 1024
    buffer_load_dwordx4 v3, s[8:11], s39 offen lds
    s_add_u32 m0, s40, 1024
    s_lshl_b32 s42, s24, 10
    buffer_load_dword v4, s[8:11], s41 offen lds
    s_add_u32 m0, s42, {C1_OFF}
    s_cmp_ge_u32 s24, 3
    buffer_load_dwordx4 v3, s[16:19], s42 offen lds
    s_cbranch_scc1 K1_NOC2
    s_add_u32 s42, s42, 8192
    s_add_u32 m0, s42, {C1_OFF}
    s_nop 0
    buffer_load_dwordx4 v3, s[16:19], s42 offen lds""")
    a.label("K1_NOC2")
    a("s_mov_b32 s43, 0xffff0000")
    a("s_waitcnt vmcnt(8)")
    for j in range(5):
        a(f"v_lshlrev_b32 v{20+2*j}, 16, v{8+j}\nv_and_b32 v{21+2*j}, s43, v{8+j}")
    a("v_add_f32 v40, v20, v21\nv_add_f32 v41, v22, v23\nv_add_f32 v42, v24, v25\nv_add_f32 v43, v26, v27\nv_add_f32 v44, v28, v29")
    a("v_add_f32 v40, v40, v41\nv_add_f32 v42, v42, v43\nv_add_f32 v40, v40, v44\nv_add_f32 v40, v40, v42")
    a("s_waitcnt vmcnt(3)")
    for j in range(5):
        a(f"v_lshlrev_b32 v{30+2*j}, 16, v{13+j}\nv_and_b32 v{31+2*j}, s43, v{13+j}")
    for k in range(10): a(f"v_mul_f32 v{30+k}, v{20+k}, v{30+k}")
    for j in range(5): a(f"v_cvt_pk_bf16_f32 v{13+j}, v{30+2*j}, v{31+2*j}")
    for j in range(5):
        a(f"v_lshlrev_b32 v{30+2*j}, 16, v{13+j}\nv_and_b32 v{31+2*j}, s43, v{13+j}")
    a("v_add_f32 v41, v30, v31\nv_add_f32 v42, v32, v33\nv_add_f32 v43, v34, v35\nv_add_f32 v44, v36, v37\nv_add_f32 v45, v38, v39")
    a("v_add_f32 v41, v41, v42\nv_add_f32 v43, v43, v44\nv_add_f32 v41, v41, v45\nv_add_f32 v41, v41, v43")
    a("s_nop 1")
    wave_sum(a, [40, 41], [46, 47])
    a(f"v_mul_f32 v40, {float_hex(1.0/640)}, v40")
    for k in range(10): a(f"v_sub_f32 v{20+k}, v{20+k}, v40")
    a("v_mul_f32 v42, v20, v20\nv_mul_f32 v43, v21, v21")
    for k in range(2, 10): a(f"v_fmac_f32 v{42+(k&1)}, v{20+k}, v{20+k}")
    a("v_add_f32 v42, v42, v43\ns_nop 1")
    wave_sum(a, [42], [46])
    a(f"v_mul_f32 v42, {float_hex(1.0/640)}, v42")
    a("v_cvt_pk_bf16_f32 v44, v40, v42")
    a("v_cvt_pk_bf16_f32 v45, v41, v41")
    a("v_lshlrev_b32 v40, 16, v44\nv_and_b32 v42, s43, v44\nv_and_b32 v41, s43, v45")
    a(f"v_add_f32 v42, {float_hex(1e-5)}, v42\nv_mul_f32 v41, {float_hex(-1.4426950408889634)}, v41")
    a("v_cvt_pk_bf16_f32 v42, v42, v42\nv_exp_f32 v41, v41\nv_and_b32 v42, s43, v42\nv_add_f32 v41, 1.0, v41")
    a("v_sqrt_f32 v42, v42\nv_rcp_f32 v41, v41\ns_nop 0\nv_cvt_pk_bf16_f32 v42, v42, v42\nv_cvt_pk_bf16_f32 v41, v41, v41")
    a("v_and_b32 v42, s43, v42\nv_and_b32 v41, s43, v41\nv_rcp_f32 v42, v42")
    a(f"s_lshl_b32 s44, s24, 2\ns_add_u32 s44, s44, {ST_OFF}\nv_mov_b32 v46, s44\ns_lshl_b32 s45, s38, 2\ns_add_u32 s45, s45, {GATE_OFF}\nv_mov_b32 v47, 0")
    a("s_waitcnt vmcnt(0)")
    a("s_mov_b64 exec, 1")
    a("ds_write_b32 v46, v40\nds_write_b32 v46, v42 offset:32\nbuffer_store_dword v41, v47, s[12:15], s45 offen")
    a("s_mov_b64 exec, -1")
    a("s_waitcnt lgkmcnt(0)\ns_barrier")
    a("v_lshrrev_b32 v5, 4, v2\nv_and_b32 v6, 15, v2\nv_lshrrev_b32 v7, 2, v6\nv_and_b32 v6, 3, v6")
    a("s_cmp_ge_u32 s24, 4\ns_cbranch_scc1 K1_HT")
    a(f"""v_lshrrev_b32 v1, 5, v2
    v_lshlrev_b32 v3, 3, v1
    v_add_u32 v3, v3, v7
    v_mul_u32_u24 v3, 40, v3
    v_and_b32 v4, 1, v5
    v_lshlrev_b32 v4, 5, v4
    v_add_u32 v3, v3, v4
    v_lshlrev_b32 v4, 3, v6
    v_add_u32 v3, v3, v4
    s_mul_i32 s40, s24, {2*X_PITCH}
    v_add_u32 v3, s40, v3
    v_lshlrev_b32 v4, 4, v2""")
    for R in range(2):
        for q in range(2):
            base = 8 + (R * 2 + q) * 4
            for wh in range(2):
                a(f"ds_read_b64_tr_b16 v[{base+2*wh}:{base+2*wh+1}], v3 offset:{R*X_PITCH + 640*q + 160*wh}")
    for i in range(4): a(f"ds_read_b128 v[{24+4*i}:{27+4*i}], v4 offset:{C1_OFF + 1024*i}")
    for i in range(4): a(f"ds_read_b128 v[{40+4*i}:{43+4*i}], v4 offset:{C1_OFF + 4096 + 1024*i}")
    for j in range(2): a(f"ds_read_b128 v[{56+4*j}:{59+4*j}], v4 offset:{C1_OFF + 8192 + 1024*j}")
    Tb = lambda R, ri: 64 + (R * 2 + ri) * 16
    a("s_waitcnt lgkmcnt(6)")
    for R in range(2):
        for ri in range(2):
            for q in range(2):
                A = 8 + (R * 2 + q) * 4; B = 24 + (q * 2 + ri) * 4
                c = "0" if q == 0 else vr(Tb(R, ri), 16)
                a(f"v_mfma_f32_32x32x16_bf16 {vr(Tb(R,ri),16)}, {vr(A,4)}, {vr(B,4)}, {c}")
    Bf = lambda R, ri, q2: 8 + ((R * 2 + ri) * 2 + q2) * 4
    a("s_waitcnt lgkmcnt(0)")
    a("s_nop 7")
    def twid(R, r, tw):
        tr, ti = Tb(R, 0) + r, Tb(R, 1) + r
        a(f"v_fma_mix_f32 v4, v{ti}, v{tw}, 0 op_sel:[0,1,0] op_sel_hi:[0,1,0]")
        a(f"v_fma_mix_f32 v5, v{ti}, v{tw}, 0 op_sel_hi:[0,1,0]")
        a(f"v_fma_mix_f32 v{ti}, v{tr}, v{tw}, v5 op_sel:[0,1,0] op_sel_hi:[0,1,0]")
        a(f"v_fma_mix_f32 v{tr}, v{tr}, v{tw}, -v4 op_sel_hi:[0,1,0]")
    for R in range(2):
        for r in range(8): twid(R, r, 56 + r)
    a(f"v_lshlrev_b32 v4, 4, v2\nds_read_b128 v[56:59], v4 offset:{C1_OFF + 8192 + 2048}")
    for R in range(2):
        for ri in range(2):
            for p in range(4):
                a(f"v_cvt_pk_bf16_f32 v{Bf(R,ri,0)+p}, v{Tb(R,ri)+2*p}, v{Tb(R,ri)+2*p+1}")
    for R in range(2):
        for ri in range(2):
            for p in range(4): a(f"v_mov_b32 v{Bf(R,ri,1)+p}, 0")
    a("s_waitcnt lgkmcnt(0)")
    for R in range(2):
        for r in range(8, 12): twid(R, r, 56 + r - 8)
    a("s_mov_b32 exec_hi, 0")
    for R in range(2):
        for ri in range(2):
            for p in range(2):
                a(f"v_cvt_pk_bf16_f32 v{Bf(R,ri,1)+p}, v{Tb(R,ri)+8+2*p}, v{Tb(R,ri)+8+2*p+1}")
    a("s_mov_b32 exec_hi, -1")
    a("s_nop 4")
    Db = lambda R: 64 + R * 16
    for R in range(2):
        seq = [(0, 0, 0), (0, 0, 1), (1, 1, 0), (1, 1, 1)]
        for n, (wh, ri, q2) in enumerate(seq):
            c = "0" if n == 0 else vr(Db(R), 16)
            a(f"v_mfma_f32_32x32x16_bf16 {vr(Db(R),16)}, {vr(40+(wh*2+q2)*4,4)}, {vr(Bf(R,ri,q2),4)}, {c}")
    a(f"""v_lshrrev_b32 v1, 5, v2
    v_lshlrev_b32 v1, 7, v1
    v_and_b32 v3, 31, v2
    v_add_u32 v1, v1, v3
    v_lshlrev_b32 v1, 4, v1
    s_lshl_b32 s40, s24, 2
    s_add_u32 s40, s40, {TILE_OFF}
    v_add_u32 v1, s40, v1
    s_nop 7
    s_nop 1""")
    for ri in range(2):
        for r in range(7):
            j, i = r // 4, r % 4
            a(f"v_cvt_pk_bf16_f32 v{8+ri*8+r}, v{Db(0)+8*ri+r}, v{Db(1)+8*ri+r}")
    for ri in range(2):
        for r in range(7):
            j, i = r // 4, r % 4
            a(f"ds_write_b32 v1, v{8+ri*8+r} offset:{(ri*16+8*j+i)*512}")
    a("s_branch K1_FIN")
    a.label("K1_HT")
    a(f"""s_sub_u32 s40, s24, 4
    v_mul_u32_u24 v3, {X_PITCH}, v7
    s_mul_i32 s41, s40, 320
    v_lshlrev_b32 v4, 5, v5
    v_add_u32 v3, v3, v4
    v_lshlrev_b32 v4, 3, v6
    v_add_u32 v3, v3, v4
    v_add_u32 v3, s41, v3
    v_mov_b32 v4, {ST_OFF}""")
    for rho in range(3):
        for wh in range(2):
            a(f"ds_read_b64_tr_b16 v[{24+4*rho+2*wh}:{25+4*rho+2*wh}], v3 offset:{128*rho + 4*X_PITCH*wh}")
    for i in range(4): a(f"ds_read_b128 v[{8+4*i}:{11+4*i}], v4 offset:{16*i}")
    a(f"""v_lshlrev_b32 v4, 16, v5
    v_and_b32 v1, 15, v2
    v_lshlrev_b32 v1, 4, v1
    v_add_u32 v4, v4, v1
    s_mul_i32 s41, s40, {10*64*1024}
    s_lshl_b32 s42, s25, 10
    s_add_u32 s41, s41, s42
    s_lshl_b32 s42, s26, 8
    s_add_u32 s41, s41, s42""")
    if HT_OFF: a(f"s_add_u32 s41, s41, {HT_OFF}")
    a("s_waitcnt lgkmcnt(0)")
    for rho in range(3):
        for p in range(4):
            x = 24 + 4 * rho + p; t0 = 2 * p
            a(f"""v_lshlrev_b32 v40, 16, v{x}
            v_and_b32 v41, s43, v{x}
            v_sub_f32 v40, v40, v{8+t0}
            v_sub_f32 v41, v41, v{9+t0}
            v_cvt_pk_bf16_f32 v42, v40, v41
            v_lshlrev_b32 v40, 16, v42
            v_and_b32 v41, s43, v42
            v_mul_f32 v40, v40, v{16+t0}
            v_mul_f32 v41, v41, v{17+t0}
            v_cvt_pk_bf16_f32 v{x}, v40, v41""")
        if rho == 2: a("s_mov_b32 exec_hi, 0")
        a(f"buffer_store_dwordx4 v[{24+4*rho}:{27+4*rho}], v4, s[12:15], s41 offen")
        if rho < 2: a(f"s_add_u32 s41, s41, {4*65536}")
    a("s_mov_b32 exec_hi, -1")
    a.label("K1_FIN")
    a(f"""s_waitcnt lgkmcnt(0)
    s_barrier
    v_lshlrev_b32 v3, 4, v0
    v_lshlrev_b32 v4, 13, v0
    s_lshr_b32 s40, s25, 5
    s_lshl_b32 s40, s40, 1
    s_add_u32 s40, s40, s36
    s_lshl_b32 s40, s40, 10
    s_lshl_b32 s41, s37, 5
    s_and_b32 s42, s25, 31
    s_add_u32 s41, s41, s42
    s_lshl_b32 s41, s41, 4
    s_add_u32 s40, s40, s41
    s_add_u32 s40, s40, {XD_OFF}
    s_add_u32 s41, s40, 4096
    v_cmp_gt_u32 vcc, 321, v0
    ds_read_b128 v[8:11], v3 offset:{TILE_OFF}
    ds_read_b128 v[12:15], v3 offset:{TILE_OFF + 8192}
    s_and_saveexec_b64 s[44:45], vcc
    s_cbranch_execz K1_END
    s_waitcnt lgkmcnt(1)
    buffer_store_dwordx4 v[8:11], v4, s[12:15], s40 offen
    s_waitcnt lgkmcnt(0)
    buffer_store_dwordx4 v[12:15], v4, s[12:15], s41 offen
    s_endpgm""")
    a.label("K1_WPATH")
    a.srd(8, 32, S * 321 * 2)
    a.srd(16, 34, S * 321 * 2)
    a(f"""s_sub_u32 s25, s2, 256
    s_and_b32 s26, s25, 7
    s_lshr_b32 s25, s25, 3
    s_and_b32 s27, s25, 1           ; cql
    s_lshr_b32 s25, s25, 1          ; lgh
    s_lshl_b32 s25, s25, 3
    s_add_u32 s25, s25, s26         ; lg
    s_and_b32 s26, s25, 3           ; cqh
    s_lshr_b32 s25, s25, 2          ; eq
    s_lshl_b32 s26, s26, 1
    s_add_u32 s26, s26, s27         ; cq
    s_and_b32 s36, s24, 3           ; ci
    s_lshl_b32 s37, s26, 2
    s_add_u32 s37, s37, s36
    s_lshl_b32 s38, s25, 7
    s_add_u32 s37, s37, s38
    s_mul_i32 s37, s37, 642
    s_mul_i32 s38, s24, {4*W_PITCH}
    v_min_u32 v3, 626, v3
    s_mov_b32 exec_lo, -1
    s_mov_b32 exec_hi, 0x1ff
    s_cmp_ge_u32 s24, 4
    s_cbranch_scc1 K1_WI""")
    for ei in range(4):
        a(f"s_add_u32 m0, s38, {W_PITCH*ei}\ns_add_u32 s39, s37, {32*642*ei}\nbuffer_load_dwordx4 v3, s[8:11], s39 offen lds")
    a("s_branch K1_WJ")
    a.label("K1_WI")
    for ei in range(4):
        a(f"s_add_u32 m0, s38, {W_PITCH*ei}\ns_add_u32 s39, s37, {32*642*ei}\nbuffer_load_dwordx4 v3, s[16:19], s39 offen lds")
    a.label("K1_WJ")
    a(f"""s_mov_b64 exec, -1
    v_lshrrev_b32 v5, 4, v2
    v_and_b32 v6, 15, v2
    v_lshrrev_b32 v7, 2, v6
    v_and_b32 v1, 3, v6
    v_lshl_add_u32 v3, v5, 2, v7
    v_mul_u32_u24 v3, {W_PITCH}, v3
    v_lshl_add_u32 v3, v1, 3, v3
    s_lshl_b32 s36, s24, 5
    v_add_u32 v3, s36, v3
    v_lshlrev_b32 v4, 13, v6
    v_lshl_add_u32 v4, v5, 4, v4
    s_lshr_b32 s36, s25, 1
    s_lshl_b32 s36, s36, 10
    s_and_b32 s37, s25, 1
    s_lshl_b32 s37, s37, 5
    s_lshl_b32 s38, s26, 2
    s_add_u32 s37, s37, s38
    s_lshl_b32 s37, s37, 4
    s_add_u32 s36, s36, s37
    s_lshl_b32 s37, s24, 17
    s_add_u32 s36, s36, s37
    s_add_u32 s36, s36, {WT_OFF}
    s_waitcnt vmcnt(0)
    s_barrier""")
    for rnd in range(3):
        a(f"ds_read_b64_tr_b16 v[{8+4*rnd}:{9+4*rnd}], v3 offset:{256*rnd}")
        a(f"ds_read_b64_tr_b16 v[{10+4*rnd}:{11+4*rnd}], v3 offset:{256*rnd + 16*W_PITCH}")
    a("s_waitcnt lgkmcnt(4)\nbuffer_store_dwordx4 v[8:11], v4, s[12:15], s36 offen")
    a(f"s_add_u32 s36, s36, {8*131072}\ns_waitcnt lgkmcnt(2)\nbuffer_store_dwordx4 v[12:15], v4, s[12:15], s36 offen")
    a("s_cmp_gt_u32 s24, 4\ns_cbranch_scc1 K1_END")
    a(f"s_add_u32 s36, s36, {8*131072}")
    a("s_cmp_eq_u32 s24, 4\ns_cbranch_scc0 K1_W2")
    a(f"s_sub_u32 s36, s36, {(320-313)*8192}\nv_cmp_eq_u32 vcc, 7, v6\ns_and_b64 exec, exec, vcc")
    a.label("K1_W2")
    a("s_waitcnt lgkmcnt(0)\nbuffer_store_dwordx4 v[16:19], v4, s[12:15], s36 offen")
    a.label("K1_END")
    a("s_endpgm")

def float_hex(x):
    return "0x%08x" % int(np.float32(x).view(np.uint32))

def desc(a, name, vgpr, sgpr=96):
    acc = (vgpr + 3) // 4 * 4
    a(f""".p2align 6
    .amdhsa_kernel {name}
    .amdhsa_next_free_vgpr {vgpr}
    .amdhsa_next_free_sgpr {sgpr}
    .amdhsa_accum_offset {acc}
    .amdhsa_group_segment_fixed_size 0
    .amdhsa_kernarg_size 96
    .amdhsa_user_sgpr_count 2
    .amdhsa_user_sgpr_kernarg_segment_ptr 1
    .amdhsa_system_sgpr_workgroup_id_x 1
    .end_amdhsa_kernel""")
```

```python
from common import *
from k1 import float_hex
import gemm
from gemm import *
K2_LDS = 81920
C2 = 0
F_OFF = 0; E_OFF = 6144; GO_OFF = 18432; TW1_OFF = 24576; TW2_OFF = 32768

def gelu_pair(a, x0, x1, t0, t1, t2, t3, c1, c2):
    a(f"v_mul_f32 v{t0}, v{x0}, v{x0}\nv_mul_f32 v{t1}, v{x1}, v{x1}")
    a(f"v_fma_f32 v{t0}, v{t0}, s{c1}, v{t2}\nv_fma_f32 v{t1}, v{t1}, s{c1}, v{t2}")
    a(f"v_mul_f32 v{t0}, v{t0}, v{x0}\nv_mul_f32 v{t1}, v{t1}, v{x1}")
    a(f"v_exp_f32 v{t0}, v{t0}\nv_exp_f32 v{t1}, v{t1}")
    a(f"s_nop 0\nv_add_f32 v{t0}, 1.0, v{t0}\nv_add_f32 v{t1}, 1.0, v{t1}")
    a(f"v_rcp_f32 v{t0}, v{t0}\nv_rcp_f32 v{t1}, v{t1}")
    a(f"s_nop 0\nv_mul_f32 v{x0}, v{x0}, v{t0}\nv_mul_f32 v{x1}, v{x1}, v{t1}")

def gen_k2(a, name="k2_kernel", opts=None):
    opts = opts or {}
    DEP = opts.get("k2_depth", 3)
    exact = opts.get("exact_round", True)
    a(f".globl {name}\n.p2align 8\n.type {name},@function")
    a.label(name)
    a("s_cmp_ge_u32 s2, 256\ns_cbranch_scc1 K2_END")
    a("s_load_dwordx4 s[4:7], s[0:1], 32\ns_load_dwordx2 s[28:29], s[0:1], 88")
    a("v_lshrrev_b32 v1, 6, v0\nv_and_b32 v2, 63, v0")
    a("s_getpc_b64 s[30:31]\ns_add_u32 s30, s30, table2@rel32@lo+4\ns_addc_u32 s31, s31, table2@rel32@hi+12")
    a("v_readfirstlane_b32 s24, v1")
    a("s_and_b32 s25, s2, 7\ns_lshr_b32 s26, s2, 3")
    a("s_waitcnt lgkmcnt(0)")
    a.srd(12, 28, WS_USED)
    a("s_cmp_ge_u32 s26, 27\ns_cbranch_scc1 K2_FFT")
    a.srd(8, 4, S * F * 2)
    a.srd(16, 6, F * 2)
    a(f"""s_and_b32 s27, s25, 1          ; H
    s_lshr_b32 s32, s25, 1
    s_mul_i32 s32, s32, 27
    s_add_u32 s32, s32, s26        ; lin
    s_lshr_b32 s33, s32, 2
    s_and_b32 s32, s32, 3
    s_lshl_b32 s27, s27, 2
    s_add_u32 s27, s27, s32        ; dt80
    s_mul_i32 s34, s25, 27
    s_add_u32 s34, s34, s26        ; gi""")
    a("s_cmp_ge_u32 s24, 4\ns_cbranch_scc1 K2_GGEN")
    a(f"s_mul_i32 s36, s24, 20480")
    dma_lane_piece(a, 1)
    a(f"s_mov_b32 s37, {64*3456}\nv_mul_lo_u32 v13, v13, s37\nv_add_u32 v{V_DMA}, v13, v1")
    a(f"v_lshlrev_b32 v{V_B}, 4, v2")
    for dt in range(1, 5): a(f"v_add_u32 v{V_B+dt}, {dt*65536}, v{V_B}")
    gemm_setup_tr(a, 36)
    a(f"""s_lshl_b32 s38, s24, 4          ; kbase
    s_mul_i32 s39, s38, 3456
    s_lshl_b32 s40, s33, 7
    s_add_u32 s39, s39, s40         ; s_dma
    s_mul_i32 s40, s27, {5*64}
    s_add_u32 s40, s40, s38
    s_lshl_b32 s40, s40, 10""")
    if HT_OFF: a(f"s_add_u32 s40, s40, {HT_OFF}")
    ci = [0, 16, 8, 24]
    gemm_loop(a, 16, DEP, 8, 12, 36, 39, 40, 41, lambda k, i: k * 3456 + ci[i] * 64 * 3456, swap=False)
    a(f"v_lshlrev_b32 v1, 4, v2\nv_add_u32 v1, s36, v1\ns_nop 7")
    for t in range(20): a(f"ds_write_b128 v1, {vr(ACC+4*t,4)} offset:{t*1024}")
    a("s_branch K2_EPI")
    a.label("K2_GGEN")
    a(f"""s_lshl_b32 s36, s34, 2
    s_add_u32 s36, s36, s24
    s_sub_u32 s36, s36, 4
    s_cmp_ge_u32 s36, 800
    s_cbranch_scc1 K2_EPI
    s_mul_hi_u32 s37, s36, {(2**32+19)//20}    ; dt16
    s_mul_i32 s38, s37, 20
    s_sub_u32 s38, s36, s38         ; q
    v_and_b32 v3, 15, v2
    s_lshl_b32 s39, s37, 4
    v_add_u32 v3, s39, v3           ; d
    v_lshrrev_b32 v4, 4, v2
    v_lshlrev_b32 v4, 2, v4
    s_lshl_b32 s39, s38, 5
    v_add_u32 v4, s39, v4
    s_mov_b32 s40, 52429
    s_movk_i32 s41, 640""")
    for t in range(8):
        off = t if t < 4 else 16 + t - 4
        r = 16 + t
        a(f"""v_add_u32 v5, {off}, v4
        v_lshrrev_b32 v6, 1, v5
        v_and_b32 v7, 1, v5
        v_cmp_eq_u32 vcc, 1, v5
        v_mov_b32 v8, 320
        v_cvt_f32_u32 v7, v7
        v_cndmask_b32 v6, v6, v8, vcc
        v_cndmask_b32 v7, v7, 0, vcc
        v_mul_u32_u24 v6, v6, v3
        v_lshrrev_b32 v8, 7, v6
        v_mul_u32_u24 v8, s40, v8
        v_lshrrev_b32 v8, 18, v8
        v_mul_u32_u24 v8, s41, v8
        v_sub_u32 v6, v6, v8
        v_cvt_f32_u32 v6, v6
        v_mul_f32 v7, 0.25, v7""".replace("v_mul_f32 v7, 0.25, v7", f"v_mul_f32 v7, {float_hex(0.25)}, v7").replace("v_cndmask_b32 v7, v7, 0, vcc", "v_cndmask_b32_e64 v7, v7, 0, vcc"))
        a(f"""v_fma_f32 v6, v6, s42, v7
        v_cos_f32 v6, v6
        v_cmp_gt_u32 vcc, 2, v5
        v_mov_b32 v8, {float_hex(2.0**-17)}
        v_mov_b32 v9, {float_hex(2.0**-18)}
        v_cndmask_b32 v8, v8, v9, vcc
        v_mul_f32 v{r}, v6, v8""") if False else None
        a(f"v_fma_f32 v6, v6, v10, v7") if False else None
        a(f"""v_mul_f32 v6, {float_hex(1.0/640)}, v6
        v_add_f32 v6, v6, v7
        v_cos_f32 v6, v6
        v_cmp_gt_u32 vcc, 2, v5
        v_mov_b32 v8, {float_hex(2.0**-17)}
        v_mov_b32 v9, {float_hex(2.0**-18)}
        v_cndmask_b32 v8, v8, v9, vcc
        v_mul_f32 v{r}, v6, v8""")
    for p in range(4): a(f"v_cvt_pk_bf16_f32 v{24+p}, v{16+2*p}, v{17+2*p}")
    a(f"""v_lshlrev_b32 v1, 4, v2
    s_lshl_b32 s36, s36, 10
    s_add_u32 s36, s36, {GT_OFF}
    buffer_store_dwordx4 v[24:27], v1, s[12:15], s36 offen""")
    a.label("K2_EPI")
    a(f"""v_lshrrev_b32 v3, 4, v2
    v_lshlrev_b32 v3, 3, v3          ; 4g*2 bytes
    s_lshl_b32 s42, s33, 7           ; f0*2 bytes
    s_mov_b32 s43, 0xffff0000
    s_mov_b32 s44, {float_hex(-2*1.4426950408889634*0.7978845608028654*0.044715)}
    v_mov_b32 v12, {float_hex(-2*1.4426950408889634*0.7978845608028654)}""")
    for rnd in range(2):
        if rnd == 1:
            a("s_cmp_ge_u32 s24, 2\ns_cbranch_scc1 K2_END")
        a(f"""s_add_u32 s45, s24, {8*rnd}
        s_cmp_ge_u32 s45, 5
        s_cselect_b32 s46, 1, 0          ; jp
        s_mul_i32 s47, s46, 5
        s_sub_u32 s47, s45, s47          ; dt
        s_lshl_b32 s48, s46, 6
        s_add_u32 s48, s48, s42
        buffer_load_dwordx2 v[4:5], v3, s[16:19], s48 offen
        buffer_load_dwordx2 v[6:7], v3, s[16:19], s48 offen offset:32
        s_mul_i32 s49, s46, 10
        s_add_u32 s49, s49, s47
        s_lshl_b32 s49, s49, 10          ; tile0 * 1024
        v_lshlrev_b32 v8, 4, v2
        v_add_u32 v8, s49, v8
        v_add_u32 v9, 40960, v8
        s_mul_i32 s50, s27, 5
        s_add_u32 s50, s50, s47
        s_mul_i32 s50, s50, 54
        s_lshl_b32 s51, s33, 1
        s_add_u32 s50, s50, s51
        s_add_u32 s50, s50, s46
        s_lshl_b32 s50, s50, 10
        s_add_u32 s50, s50, {U_OFF}""")
        if rnd == 0: a("s_waitcnt lgkmcnt(0)\ns_barrier")
        for p in range(4):
            for tt in range(2):
                base = 8 if p < 2 else 9
                a(f"ds_read_b128 {vr(16+(p*2+tt)*4,4)}, v{base} offset:{(p%2)*20480 + tt*5120}")
        a("s_waitcnt lgkmcnt(4)")
        for k in range(8): a(f"v_add_f32 v{16+k}, v{16+k}, v{24+k}")
        a("s_waitcnt lgkmcnt(0)")
        for k in range(8): a(f"v_add_f32 v{32+k}, v{32+k}, v{40+k}")
        for k in range(8): a(f"v_add_f32 v{16+k}, v{16+k}, v{32+k}")
        a("s_waitcnt vmcnt(0)")
        for p in range(4):
            a(f"v_lshlrev_b32 v{24+2*p}, 16, v{4+p}\nv_and_b32 v{25+2*p}, s43, v{4+p}")
        if exact:
            for p in range(4): a(f"v_cvt_pk_bf16_f32 v{32+p}, v{16+2*p}, v{17+2*p}")
            for p in range(4): a(f"v_lshlrev_b32 v{16+2*p}, 16, v{32+p}\nv_and_b32 v{17+2*p}, s43, v{32+p}")
        for k in range(8): a(f"v_add_f32 v{16+k}, v{16+k}, v{24+k}")
        if exact:
            for p in range(4): a(f"v_cvt_pk_bf16_f32 v{32+p}, v{16+2*p}, v{17+2*p}")
            for p in range(4): a(f"v_lshlrev_b32 v{16+2*p}, 16, v{32+p}\nv_and_b32 v{17+2*p}, s43, v{32+p}")
        for k in range(8): a(f"v_mul_f32 v{24+k}, v{16+k}, v{16+k}")
        for k in range(8): a(f"v_fma_f32 v{24+k}, v{24+k}, s44, v12")
        for k in range(8): a(f"v_mul_f32 v{24+k}, v{24+k}, v{16+k}")
        for k in range(8): a(f"v_exp_f32 v{24+k}, v{24+k}")
        for k in range(8): a(f"v_add_f32 v{24+k}, 1.0, v{24+k}")
        for k in range(8): a(f"v_rcp_f32 v{24+k}, v{24+k}")
        for k in range(8): a(f"v_mul_f32 v{16+k}, v{16+k}, v{24+k}")
        for p in range(4): a(f"v_cvt_pk_bf16_f32 v{32+p}, v{16+2*p}, v{17+2*p}")
        a(f"v_lshlrev_b32 v1, 4, v2\nbuffer_store_dwordx4 v[32:35], v1, s[12:15], s50 offen")
    a("s_endpgm")
    gen_fft(a, opts)
    a.label("K2_END")
    a("s_endpgm")

def gen_fft(a, opts):
    a.label("K2_FFT")
    a.srd(16, 30, 40960)
    a(f"""s_mul_i32 s27, s25, 5
    s_add_u32 s27, s27, s26
    s_sub_u32 s27, s27, 27
    s_lshl_b32 s32, s27, 3
    s_add_u32 s32, s32, s24          ; v
    v_lshlrev_b32 v3, 4, v2
    s_mul_i32 s33, s24, 5120""")
    for i in range(5):
        a(f"s_add_u32 s34, s33, {1024*i}\ns_mov_b32 m0, s34\ns_nop 0\nbuffer_load_dwordx4 v3, s[16:19], s34 offen lds")
    a("s_mov_b32 s43, 0xffff0000")
    a("v_and_b32 v4, 31, v2\nv_lshlrev_b32 v4, 2, v4\nv_lshrrev_b32 v5, 5, v2\nv_lshl_add_u32 v4, v5, 9, v4")
    a("s_waitcnt vmcnt(0)\ns_barrier")
    a.label("K2_FFT_COL")
    Z = 8
    Wc = 40
    AC = 72
    AC2 = 136
    CT = 200
    TW = 224
    PK = 8
    a(f"s_lshl_b32 s34, s32, 13\ns_add_u32 s35, s34, {XD_OFF}\ns_add_u32 s36, s34, {WT_OFF}")
    def zf(mt, ri, q): return Z + ((mt * 2 + ri) * 2 + q) * 4
    a("s_add_u32 s37, s35, 4096")
    for mt in range(2):
        for ri in range(2):
            for q in range(2):
                a(f"buffer_load_dwordx4 {vr(zf(mt,ri,q),4)}, v3, s[12:15], s{35 if ri==0 else 37} offen offset:{(mt*2+q)*1024}")
    a("s_add_u32 s37, s36, 4096")
    for blk in range(8):
        a(f"buffer_load_dwordx4 {vr(Wc+4*blk,4)}, v3, s[12:15], s{36 if blk<4 else 37} offen offset:{(blk%4)*1024}")
    def ldc(dst, off): a(f"ds_read_b128 {vr(dst,4)}, v3 offset:{off}")
    M = "v_mfma_f32_32x32x16_bf16"
    for i in range(6): ldc(CT + 4 * i, F_OFF + 1024 * i)
    Fc = lambda ri3, q: vr(CT + (ri3 * 2 + q) * 4, 4)
    def acc(base, x, ri): return base + (x * 2 + ri) * 16
    a("s_waitcnt vmcnt(8) lgkmcnt(0)")
    for mt in range(2):
        tr, ti = acc(AC, mt, 0), acc(AC, mt, 1)
        a(f"{M} {vr(tr,16)}, {vr(zf(mt,0,0),4)}, {Fc(0,0)}, 0")
        a(f"{M} {vr(ti,16)}, {vr(zf(mt,0,0),4)}, {Fc(1,0)}, 0")
        a(f"{M} {vr(tr,16)}, {vr(zf(mt,0,1),4)}, {Fc(0,1)}, {vr(tr,16)}")
        a(f"{M} {vr(ti,16)}, {vr(zf(mt,0,1),4)}, {Fc(1,1)}, {vr(ti,16)}")
        a(f"{M} {vr(tr,16)}, {vr(zf(mt,1,0),4)}, {Fc(2,0)}, {vr(tr,16)}")
        a(f"{M} {vr(ti,16)}, {vr(zf(mt,1,0),4)}, {Fc(0,0)}, {vr(ti,16)}")
        a(f"{M} {vr(tr,16)}, {vr(zf(mt,1,1),4)}, {Fc(2,1)}, {vr(tr,16)}")
        a(f"{M} {vr(ti,16)}, {vr(zf(mt,1,1),4)}, {Fc(0,1)}, {vr(ti,16)}")
    def twid(tr, ti, tw):
        a(f"v_fma_mix_f32 v5, v{ti}, v{tw}, 0 op_sel:[0,1,0] op_sel_hi:[0,1,0]")
        a(f"v_fma_mix_f32 v6, v{ti}, v{tw}, 0 op_sel_hi:[0,1,0]")
        a(f"v_fma_mix_f32 v{ti}, v{tr}, v{tw}, v6 op_sel:[0,1,0] op_sel_hi:[0,1,0]")
        a(f"v_fma_mix_f32 v{tr}, v{tr}, v{tw}, -v5 op_sel_hi:[0,1,0]")
    def twiddle_block(base, off):
        ldc(TW, off); ldc(TW + 4, off + 1024)
        n = 0
        for x in range(2):
            for j in range(4):
                cur = TW + 4 * (n % 2)
                a(f"s_waitcnt lgkmcnt({1 if n < 7 else 0})")
                for i in range(4): twid(acc(base, x, 0) + 4 * j + i, acc(base, x, 1) + 4 * j + i, cur + i)
                if n + 2 < 8: ldc(cur, off + (n + 2) * 1024)
                n += 1
    a("s_nop 7\ns_nop 3")
    twiddle_block(AC, TW1_OFF)
    tq = lambda par, mt, ri: PK + ((par * 2 + mt) * 2 + ri) * 4
    for par in range(2):
        for mt in range(2):
            for ri in range(2):
                for j in range(4):
                    s = acc(AC, mt, ri) + 4 * j + par
                    a(f"v_cvt_pk_bf16_f32 v{tq(par,mt,ri)+j}, v{s}, v{s+2}")
    for par in range(2):
        for i in range(6): ldc(CT + 4 * i, E_OFF + (par * 6 + i) * 1024)
        Ec = lambda ri3, mt: vr(CT + (ri3 * 2 + mt) * 4, 4)
        a("s_waitcnt lgkmcnt(0)")
        er, ei = acc(AC2, par, 0), acc(AC2, par, 1)
        a(f"{M} {vr(er,16)}, {Ec(0,0)}, {vr(tq(par,0,0),4)}, 0")
        a(f"{M} {vr(ei,16)}, {Ec(1,0)}, {vr(tq(par,0,0),4)}, 0")
        a(f"{M} {vr(er,16)}, {Ec(0,1)}, {vr(tq(par,1,0),4)}, {vr(er,16)}")
        a(f"{M} {vr(ei,16)}, {Ec(1,1)}, {vr(tq(par,1,0),4)}, {vr(ei,16)}")
        a(f"{M} {vr(er,16)}, {Ec(2,0)}, {vr(tq(par,0,1),4)}, {vr(er,16)}")
        a(f"{M} {vr(ei,16)}, {Ec(0,0)}, {vr(tq(par,0,1),4)}, {vr(ei,16)}")
        a(f"{M} {vr(er,16)}, {Ec(2,1)}, {vr(tq(par,1,1),4)}, {vr(er,16)}")
        a(f"{M} {vr(ei,16)}, {Ec(0,1)}, {vr(tq(par,1,1),4)}, {vr(ei,16)}")
        if par == 0: a("s_nop 1")
    a("s_waitcnt vmcnt(0)\ns_nop 7\ns_nop 3")
    for r in range(16):
        j, i = r // 4, r % 4
        Er, Ei, Or, Oi = acc(AC2,0,0)+r, acc(AC2,0,1)+r, acc(AC2,1,0)+r, acc(AC2,1,1)+r
        Pr, Pi, Qr, Qi = acc(AC,0,0)+r, acc(AC,0,1)+r, acc(AC,1,0)+r, acc(AC,1,1)+r
        w0 = Wc + 4 * j; w1 = Wc + 4 * (4 + j)
        un = (lambda d, s: f"v_lshlrev_b32 v{d}, 16, v{s}") if i % 2 == 0 else (lambda d, s: f"v_and_b32 v{d}, s43, v{s}")
        a(un(224, w0 + i // 2)); a(un(225, w0 + 2 + i // 2)); a(un(226, w1 + i // 2)); a(un(227, w1 + 2 + i // 2))
        a(f"""v_add_f32 v228, v{Er}, v{Or}
        v_add_f32 v229, v{Ei}, v{Oi}
        v_sub_f32 v230, v{Er}, v{Or}
        v_sub_f32 v231, v{Ei}, v{Oi}
        v_mul_f32 v232, v228, v224
        v_mul_f32 v233, v228, v225
        v_mul_f32 v234, v230, v226
        v_mul_f32 v235, v230, v227
        v_fma_f32 v232, -v229, v225, v232
        v_fmac_f32 v233, v229, v224
        v_fma_f32 v234, -v231, v227, v234
        v_fmac_f32 v235, v231, v226
        v_add_f32 v{Pr}, v232, v234
        v_add_f32 v{Pi}, v233, v235
        v_sub_f32 v{Qr}, v232, v234
        v_sub_f32 v{Qi}, v233, v235""")
    pq = lambda x, ri, q: PK + ((x * 2 + ri) * 2 + q) * 4
    for i in range(6): ldc(CT + 4 * i, F_OFF + 1024 * i)
    for x in range(2):
        for ri in range(2):
            for q in range(2):
                for p in range(4):
                    s = acc(AC, x, ri) + 8 * q + 2 * p
                    a(f"v_cvt_pk_bf16_f32 v{pq(x,ri,q)+p}, v{s}, v{s+1}")
    a("s_waitcnt lgkmcnt(0)")
    def cmul_dataA(dr, di, x, Gr, Gi, Gn):
        a(f"{M} {vr(dr,16)}, {vr(pq(x,0,0),4)}, {Gr(0)}, 0")
        a(f"{M} {vr(di,16)}, {vr(pq(x,0,0),4)}, {Gi(0)}, 0")
        a(f"{M} {vr(dr,16)}, {vr(pq(x,0,1),4)}, {Gr(1)}, {vr(dr,16)}")
        a(f"{M} {vr(di,16)}, {vr(pq(x,0,1),4)}, {Gi(1)}, {vr(di,16)}")
        a(f"{M} {vr(dr,16)}, {vr(pq(x,1,0),4)}, {Gn(0)}, {vr(dr,16)}")
        a(f"{M} {vr(di,16)}, {vr(pq(x,1,0),4)}, {Gr(0)}, {vr(di,16)}")
        a(f"{M} {vr(dr,16)}, {vr(pq(x,1,1),4)}, {Gn(1)}, {vr(dr,16)}")
        a(f"{M} {vr(di,16)}, {vr(pq(x,1,1),4)}, {Gr(1)}, {vr(di,16)}")
    for i in range(6): ldc(Wc + 4 * i, GO_OFF + 1024 * i)
    cmul_dataA(acc(AC2,0,0), acc(AC2,0,1), 0, lambda q: Fc(0,q), lambda q: Fc(2,q), lambda q: Fc(1,q))
    Gc = lambda ri3, q: vr(Wc + (ri3 * 2 + q) * 4, 4)
    a("s_waitcnt lgkmcnt(0)")
    cmul_dataA(acc(AC2,1,0), acc(AC2,1,1), 1, lambda q: Gc(0,q), lambda q: Gc(1,q), lambda q: Gc(2,q))
    a("s_nop 7\ns_nop 3")
    twiddle_block(AC2, TW2_OFF)
    for x in range(2):
        for ri in range(2):
            for q in range(2):
                for p in range(4):
                    s = acc(AC2, x, ri) + 8 * q + 2 * p
                    a(f"v_cvt_pk_bf16_f32 v{pq(x,ri,q)+p}, v{s}, v{s+1}")
    a("s_nop 1")
    for x in range(2):
        dr, di = acc(AC, x, 0), acc(AC, x, 1)
        a(f"{M} {vr(dr,16)}, {Fc(0,0)}, {vr(pq(x,0,0),4)}, 0")
        a(f"{M} {vr(di,16)}, {Fc(2,0)}, {vr(pq(x,0,0),4)}, 0")
        a(f"{M} {vr(dr,16)}, {Fc(0,1)}, {vr(pq(x,0,1),4)}, {vr(dr,16)}")
        a(f"{M} {vr(di,16)}, {Fc(2,1)}, {vr(pq(x,0,1),4)}, {vr(di,16)}")
        a(f"{M} {vr(dr,16)}, {Fc(1,0)}, {vr(pq(x,1,0),4)}, {vr(dr,16)}")
        a(f"{M} {vr(di,16)}, {Fc(0,0)}, {vr(pq(x,1,0),4)}, {vr(di,16)}")
        a(f"{M} {vr(dr,16)}, {Fc(1,1)}, {vr(pq(x,1,1),4)}, {vr(dr,16)}")
        a(f"{M} {vr(di,16)}, {Fc(0,1)}, {vr(pq(x,1,1),4)}, {vr(di,16)}")
    a(f"""s_lshl_b32 s34, s32, 13          ; 2v*4096
    s_cmp_eq_u32 s32, 320
    s_cselect_b32 s34, 4096, s34
    s_add_u32 s34, s34, {ZT_OFF}
    s_add_u32 s35, s34, 4096
    s_nop 7""")
    for r in range(16):
        j, i = r // 4, r % 4
        a(f"v_cvt_pk_bf16_f32 v{8+r}, v{acc(AC,0,0)+r}, v{acc(AC,1,0)+r}")
    for r in range(16):
        j, i = r // 4, r % 4
        a(f"buffer_store_dword v{8+r}, v4, s[12:15], s34 offen offset:{1024*j+128*i}")
    a("s_cmp_eq_u32 s32, 0\ns_cbranch_scc1 K2_FFT_NEXT\ns_cmp_eq_u32 s32, 320\ns_cbranch_scc1 K2_END")
    for r in range(16):
        a(f"v_cvt_pk_bf16_f32 v{24+r}, v{acc(AC,0,1)+r}, v{acc(AC,1,1)+r}")
    for r in range(16):
        j, i = r // 4, r % 4
        a(f"buffer_store_dword v{24+r}, v4, s[12:15], s35 offen offset:{1024*j+128*i}")
    a("s_endpgm")
    a.label("K2_FFT_NEXT")
    a("s_movk_i32 s32, 320\ns_waitcnt vmcnt(0)\ns_branch K2_FFT_COL")
```

```python
from common import *
from k1 import float_hex
from gemm import *
REG = 22528
K3_LDS = 4 * REG

def gen_k3(a, name="k3_kernel", opts=None):
    opts = opts or {}
    DEP = opts.get("k3_depth", 3)
    exact = opts.get("exact_round", True)
    a(f".globl {name}\n.p2align 8\n.type {name},@function")
    a.label(name)
    a("s_cmp_ge_u32 s2, 256\ns_cbranch_scc1 K3_END")
    a("s_load_dwordx4 s[4:7], s[0:1], 48\ns_load_dwordx2 s[28:29], s[0:1], 88\ns_load_dwordx2 s[30:31], s[0:1], 72")
    a("v_lshrrev_b32 v1, 6, v0\nv_and_b32 v2, 63, v0")
    a("s_and_b32 s25, s2, 7\ns_lshr_b32 s26, s2, 3")
    a("v_readfirstlane_b32 s24, v1")
    a(f"""s_lshr_b32 s27, s25, 1
    s_lshl_b32 s27, s27, 3
    s_lshr_b32 s32, s26, 2
    s_add_u32 s27, s27, s32          ; s-tile
    s_and_b32 s32, s25, 1
    s_lshl_b32 s32, s32, 2
    s_and_b32 s33, s26, 3
    s_add_u32 s32, s32, s33          ; dt80""")
    a("s_waitcnt lgkmcnt(0)")
    a.srd(12, 28, WS_USED)
    a.srd(8, 4, F * S * 2)
    a.srd(16, 6, S * 2)
    a.srd(20, 30, S * D * 2)
    a("s_cmp_ge_u32 s24, 4\ns_cbranch_scc1 K3_EPI")
    a(f"s_mul_i32 s36, s24, {REG}")
    dma_lane_piece(a, 1)
    a(f"v_lshlrev_b32 v13, 12, v13\nv_add_u32 v{V_DMA}, v13, v1")
    a(f"v_lshlrev_b32 v{V_B}, 4, v2")
    gemm_setup_tr(a, 36)
    a("s_cmp_eq_u32 s24, 3\ns_cbranch_scc1 K3_APART")
    for dt in range(1, 5): a(f"v_add_u32 v{V_B+dt}, {dt*54*1024}, v{V_B}")
    a(f"""s_mul_i32 s38, s24, 18          ; q base
    s_lshl_b32 s39, s38, 17          ; 32*q*4096
    s_lshl_b32 s40, s27, 7
    s_add_u32 s39, s39, s40          ; s_dma
    s_mul_i32 s40, s32, {5*54}
    s_add_u32 s40, s40, s38
    s_lshl_b32 s40, s40, 10
    s_add_u32 s40, s40, {U_OFF}""")
    gemm_loop(a, 18, DEP, 8, 12, 36, 39, 40, 41, lambda k, i: (32 * k + 8 * i) * 4096, swap=True)
    a("s_branch K3_WPART")
    a.label("K3_APART")
    for dt in range(1, 5): a(f"v_add_u32 v{V_B+dt}, {dt*20*1024}, v{V_B}")
    a(f"""s_lshl_b32 s39, s27, 7
    s_add_u32 s39, s39, {ZT_OFF}
    s_mul_i32 s40, s32, {5*20*1024}
    s_add_u32 s40, s40, {GT_OFF}""")
    gemm_loop(a, 20, DEP, 12, 12, 36, 39, 40, 41, lambda k, i: (32 * k + 8 * i) * 4096, swap=True)
    a.label("K3_WPART")
    a(f"""v_lshrrev_b32 v1, 4, v2
    v_mul_u32_u24 v1, 272, v1
    v_and_b32 v3, 15, v2
    v_lshl_add_u32 v1, v3, 4, v1
    v_add_u32 v1, s36, v1
    s_nop 4""")
    for t in range(20): a(f"ds_write_b128 v1, {vr(ACC+4*t,4)} offset:{t*1088}")
    a.label("K3_EPI")
    a(f"s_mov_b32 s43, 0xffff0000\ns_mov_b32 s44, {float_hex(0.2)}\ns_movk_i32 s45, 6554")
    for rnd in range(2):
        if rnd == 1:
            a("s_cmp_ge_u32 s24, 2\ns_cbranch_scc1 K3_END")
        a(f"""v_add_u32 v3, {512*rnd}, v0
        v_mul_u32_u24 v4, s45, v3
        v_lshrrev_b32 v4, 16, v4         ; s local
        v_mul_u32_u24 v5, 10, v4
        v_sub_u32 v5, v3, v5             ; dg
        s_lshl_b32 s46, s27, 6           ; s0
        v_add_u32 v6, s46, v4            ; s global
        v_lshlrev_b32 v7, 2, v6
        v_lshlrev_b32 v8, 1, v6
        s_mov_b32 s47, {GATE_OFF}
        buffer_load_dword v9, v7, s[12:15], s47 offen
        buffer_load_ushort v10, v8, s[16:19], 0 offen
        v_lshrrev_b32 v11, 4, v4         ; st
        v_mul_u32_u24 v11, 5, v11
        v_lshrrev_b32 v12, 1, v5         ; dt
        v_add_u32 v11, v11, v12
        v_mul_u32_u24 v11, 1088, v11
        v_and_b32 v12, 1, v5
        v_mul_u32_u24 v12, 544, v12
        v_add_u32 v11, v11, v12
        v_and_b32 v12, 15, v4
        v_lshl_add_u32 v11, v12, 4, v11
        v_add_u32 v12, {2*REG}, v11
        v_mul_u32_u24 v13, 1280, v6
        s_mul_i32 s46, s32, 160
        v_lshl_add_u32 v13, v5, 4, v13""")
        if rnd == 0: a("s_waitcnt lgkmcnt(0)\ns_barrier")
        for p in range(4):
            for hf in range(2):
                base = 11 if p < 2 else 12
                a(f"ds_read_b128 {vr(16+(p*2+hf)*4,4)}, v{base} offset:{(p%2)*REG + hf*272}")
        a("s_waitcnt lgkmcnt(4)")
        for k in range(8): a(f"v_add_f32 v{16+k}, v{16+k}, v{24+k}")
        a("s_waitcnt lgkmcnt(2)")
        for k in range(8): a(f"v_add_f32 v{16+k}, v{16+k}, v{32+k}")
        a("s_waitcnt vmcnt(0) lgkmcnt(0)")
        a("v_lshlrev_b32 v10, 16, v10\nv_sub_f32 v14, 1.0, v9\nv_cvt_pk_bf16_f32 v14, v14, v14\nv_and_b32 v14, s43, v14")
        def rnd8(base, tmp):
            for p in range(4): a(f"v_cvt_pk_bf16_f32 v{tmp+p}, v{base+2*p}, v{base+2*p+1}")
            for p in range(4): a(f"v_lshlrev_b32 v{base+2*p}, 16, v{tmp+p}\nv_and_b32 v{base+2*p+1}, s43, v{tmp+p}")
        for k in range(8): a(f"v_mul_f32 v{40+k}, s44, v{40+k}")
        if exact: rnd8(16, 24)
        rnd8(40, 28)
        for k in range(8): a(f"v_add_f32 v{16+k}, v{16+k}, v10")
        for k in range(8): a(f"v_mul_f32 v{40+k}, v{40+k}, v9")
        rnd8(16, 24)
        rnd8(40, 28)
        for k in range(8): a(f"v_mul_f32 v{16+k}, v{16+k}, v14")
        rnd8(16, 24)
        for k in range(8): a(f"v_add_f32 v{16+k}, v{16+k}, v{40+k}")
        for p in range(4): a(f"v_cvt_pk_bf16_f32 v{24+p}, v{16+2*p}, v{17+2*p}")
        a("buffer_store_dwordx4 v[24:27], v13, s[20:23], s46 offen")
    a.label("K3_END")
    a("s_endpgm")
```

```python
import sys
from common import *
import k1
HEADER = open("gated_mix__spectral_gfnet__mixer_token_mlp__prompt.s.ref").read().split("; Override launch")[0]
def build(kernels=("k1", "k2", "k3"), extra_empty=0, opts=None):
    opts = opts or {}
    a = Asm()
    launches = []
    body = Asm()
    descs = Asm()
    if "k1" in kernels:
        launches.append(("k1_kernel", 384, 512, k1.K1_LDS)); k1.gen_k1(body); k1.desc(descs, "k1_kernel", 128)
    if "k2" in kernels:
        import k2
        launches.append(("k2_kernel", 256, 512, k2.K2_LDS)); k2.gen_k2(body, opts=opts); k1.desc(descs, "k2_kernel", 256)
    if "k3" in kernels:
        import k3
        launches.append(("k3_kernel", 256, 512, k3.K3_LDS)); k3.gen_k3(body, opts=opts); k1.desc(descs, "k3_kernel", 256)
    for i in range(extra_empty):
        n = f"e{i}_kernel"
        launches.append((n, 256, 256, 0))
        body(f".globl {n}\n.p2align 8\n.type {n},@function"); body.label(n); body("s_endpgm"); k1.desc(descs, n, 8, 16)
    out = HEADER
    for (n, g, b, l) in launches:
        out += f"; @launch kernel={n} grid=({g},1,1) block=({b},1,1) lds={l}\n"
    out += '.amdgcn_target "amdgcn-amd-amdhsa--gfx950"\n.text\n'
    out += body.text()
    out += '.section .rodata,"a"\n' + descs.text()
    d = Asm()
    d.data("table1", table1())
    d.data("table2", table2())
    out += d.text()
    return out
if __name__ == "__main__":
    ks = sys.argv[2].split(",") if len(sys.argv) > 2 else ("k1", "k2", "k3")
    open(sys.argv[1], "w").write(build(ks))
```
